```python
import torch

def _softmax(x, axis=-1):
    return torch.softmax(x, dim=axis)
def _gelu(x):
    return torch.nn.functional.gelu(x, approximate="tanh")
def _silu(x):
    return torch.nn.functional.silu(x)
def _sigmoid(x):
    return torch.sigmoid(x)
def _layernorm(x, axis=-1, eps=1e-5):
    m = x.mean(dim=axis, keepdim=True)
    v = x.var(dim=axis, keepdim=True, unbiased=False)
    return (x - m) / torch.sqrt(v + eps)
def _scatter_add(tgt, idx, src, axis=0):
    return tgt.clone().index_add_(axis, idx, src)
def _segment_sum(src, seg, n):
    out = torch.zeros((n,) + src.shape[1:], dtype=src.dtype)
    return out.index_add_(0, seg, src)
def _pad(x, pw):
    flat = tuple(v for pair in reversed(pw) for v in pair)
    return torch.nn.functional.pad(x, flat)

kernel_name = 'recurrent_scan__linear_kernel_hedgehog__geglu_ffn__prompt'

def setup_inputs():

    _w = (lambda a: (lambda t: t.to(torch.bfloat16) if t.is_floating_point() else t)(torch.as_tensor(a)))
    def _A_setup():
        B, S, D, H = 1, 2048, 448, 16
        Dh = D // H
        return {
            "x": _w((lambda *s: torch.randn(*s, dtype=torch.bfloat16) * 0.05)(B, S, D)),
            "wqkv": _w((lambda *s: torch.randn(*s, dtype=torch.bfloat16) * 0.4)(D, 3 * D)),
            "w_phi": _w((lambda *s: torch.randn(*s, dtype=torch.bfloat16) * 0.4)(H, Dh, Dh) * (Dh ** -0.5)),
            "wo": _w((lambda *s: torch.randn(*s, dtype=torch.bfloat16) * 0.05)(D, D)),
        }
    _A_in = _A_setup()

    def _B_setup():
        B, S, D, F = 1, 2048, 448, 1792
        return {
            "x": _w((lambda *s: torch.randn(*s, dtype=torch.bfloat16) * 0.05)(B, S, D)),
            "w_gate": _w((lambda *s: torch.randn(*s, dtype=torch.bfloat16) * 0.05)(D, F)),
            "w_up": _w((lambda *s: torch.randn(*s, dtype=torch.bfloat16) * 0.05)(D, F)),
            "w_down": _w((lambda *s: torch.randn(*s, dtype=torch.bfloat16) * 0.05)(F, D)),
        }
    _B_in = _B_setup()

    return {
        "A_x": _A_in["x"],
        "A_wqkv": _A_in["wqkv"],
        "A_w_phi": _A_in["w_phi"],
        "A_wo": _A_in["wo"],
        "B_x": _B_in["x"],
        "B_w_gate": _B_in["w_gate"],
        "B_w_up": _B_in["w_up"],
        "B_w_down": _B_in["w_down"],
    }

def reference(A_x, A_wqkv, A_w_phi, A_wo, B_x, B_w_gate, B_w_up, B_w_down):
    def _A_ref(x, wqkv, w_phi, wo):
        B, S, D = x.shape
        H = 16; Dh = D // H
        qkv = (lambda x, *d: x.permute(*d))((x @ wqkv).reshape(B, S, 3, H, Dh), 2, 0, 3, 1, 4)
        q, k, v = qkv[0], qkv[1], qkv[2]
        pq = torch.einsum("bhsd,hdf->bhsf", q, w_phi)
        pk = torch.einsum("bhsd,hdf->bhsf", k, w_phi)
        phi_q = torch.concatenate([_softmax(pq, axis=-1), _softmax(-pq, axis=-1)], axis=-1)
        phi_k = torch.concatenate([_softmax(pk, axis=-1), _softmax(-pk, axis=-1)], axis=-1)
        kv = torch.einsum("bhsf,bhsd->bhfd", phi_k, v)
        z  = torch.einsum("bhsf->bhf", phi_k)
        num = torch.einsum("bhqf,bhfd->bhqd", phi_q, kv)
        den = torch.einsum("bhqf,bhf->bhq", phi_q, z)[..., None] + 1e-6
        o = num / den
        return (lambda x, *d: x.permute(*d))(o, 0, 2, 1, 3).reshape(B, S, D) @ wo

    def _B_ref(x, w_gate, w_up, w_down):
        return (_gelu(x @ w_gate) * (x @ w_up)) @ w_down

    x = A_x
    xn = _layernorm(x, axis=-1)
    s = _A_ref(xn, A_wqkv, A_w_phi, A_wo)
    g = _silu(_B_ref(xn, B_w_gate, B_w_up, B_w_down))
    return x + s * g
```

```python
import re, copy

def _regs(tok):
    tok = tok.strip()
    neg = tok.lstrip('-')
    if neg.startswith('abs(') or neg.startswith('|'):
        neg = neg.replace('abs(', '').replace(')', '').replace('|', '')
    tok = neg
    m = re.fullmatch(r'([vsa])\[(\d+):(\d+)\]', tok)
    if m: return [(m.group(1), i) for i in range(int(m.group(2)), int(m.group(3)) + 1)]
    m = re.fullmatch(r'([vsa])(\d+)', tok)
    if m: return [(m.group(1), int(m.group(2)))]
    if tok in ('vcc', 'vcc_lo', 'vcc_hi'): return [('x', 'vcc')]
    if tok in ('exec', 'exec_lo', 'exec_hi'): return [('x', 'exec')]
    if tok == 'm0': return [('x', 'm0')]
    if tok == 'scc': return [('x', 'scc')]
    return []

TRANS = ('v_exp_f32', 'v_log_f32', 'v_rcp_f32', 'v_rsq_f32', 'v_sqrt_f32', 'v_sin_f32', 'v_cos_f32')
FAST = ('v_fma_f32', 'v_mul_f32', 'v_add_f32', 'v_sub_f32', 'v_mov_b32', 'v_fmac_f32', 'v_fmaak_f32', 'v_fmamk_f32', 'v_subrev_f32')

class Ins:
    __slots__ = ('text', 'mn', 'kind', 'wr', 'rd', 'passes', 'mfC', 'tag', 'opt', 'wide', 'lds_dma')
    def __init__(self, text, tag=None, opt=False):
        self.text = text; self.tag = tag; self.opt = opt
        t = text.split(';')[0].strip()
        parts = t.split(None, 1)
        mn = parts[0]; self.mn = mn
        rest = parts[1] if len(parts) > 1 else ''
        ops = []; depth = 0; cur = ''
        for ch in rest:
            if ch == '[': depth += 1
            if ch == ']': depth -= 1
            if ch == ',' and depth == 0: ops.append(cur); cur = ''
            else: cur += ch
        if cur.strip(): ops.append(cur)
        ops = [o.strip() for o in ops]
        mods = ''
        if ops:
            sp = ops[-1].split(None, 1)
            if len(sp) > 1: ops[-1] = sp[0]; mods = sp[1]
        self.passes = 0; self.mfC = []; self.wide = False; self.lds_dma = False
        wr = []; rd = []
        R = lambda i: _regs(ops[i]) if i < len(ops) else []
        if mn.startswith('v_mfma'):
            self.kind = 'mfma'; self.passes = 4 if '16x16x32' in mn or '16x16x16' in mn else 8
            wr = R(0); rd = R(1) + R(2) + R(3); self.mfC = R(3)
        elif mn.startswith('buffer_load') or mn.startswith('global_load'):
            self.kind = 'vmem'
            if ' lds' in (' ' + mods) or 'load_lds' in mn:
                self.lds_dma = True
                rd = sum((R(i) for i in range(len(ops))), []) + [('x', 'm0')]
            else:
                wr = R(0); rd = sum((R(i) for i in range(1, len(ops))), [])
                if 'd16' in mn: rd += R(0)
        elif mn.startswith('buffer_store') or mn.startswith('global_store'):
            self.kind = 'vmem'; rd = sum((R(i) for i in range(len(ops))), [])
            self.wide = ('x3' in mn or 'x4' in mn)
        elif mn.startswith('ds_read'):
            self.kind = 'ds'; wr = R(0); rd = R(1)
        elif mn.startswith('ds_write'):
            self.kind = 'ds'; rd = sum((R(i) for i in range(len(ops))), [])
        elif mn.startswith('s_load') or mn in ('s_memtime', 's_memrealtime'):
            self.kind = 'smem'; wr = R(0); rd = R(1)
        elif mn in ('s_waitcnt', 's_barrier', 's_nop', 's_endpgm', 's_branch', 's_sleep', 's_setprio') or mn.startswith('s_cbranch'):
            self.kind = 'ctl'
            if mn.startswith('s_cbranch_vcc'): rd = [('x', 'vcc')]
        elif mn.startswith('s_cmp') or mn.startswith('s_bitcmp'):
            self.kind = 'salu'; rd = R(0) + R(1); wr = [('x', 'scc')]
        elif mn.startswith('s_'):
            self.kind = 'salu'; wr = R(0); rd = sum((R(i) for i in range(1, len(ops))), [])
            if 'saveexec' in mn: wr += [('x', 'exec')]
        elif mn.startswith('v_cmp'):
            self.kind = 'valu'; wr = R(0); rd = R(1) + R(2)
        elif mn.startswith('v_permlane') and 'swap' in mn:
            self.kind = 'valu'; wr = R(0) + R(1); rd = R(0) + R(1)
        elif mn.startswith('v_readfirstlane') or mn.startswith('v_readlane'):
            self.kind = 'valu'; wr = R(0); rd = R(1) + R(2)
        elif mn.startswith('v_'):
            self.kind = 'valu'; wr = R(0); rd = sum((R(i) for i in range(1, len(ops))), [])
            if mn.startswith('v_fmac') or mn.startswith('v_dot2c'): rd += R(0)
            if mn.startswith('v_add_co') or mn.startswith('v_addc_co') or mn.startswith('v_sub_co'):
                wr += R(1)
            if mn.startswith('v_cndmask') and len(ops) == 3: rd += [('x', 'vcc')]
        else:
            raise ValueError('unknown instr ' + text)
        self.wr = wr; self.rd = rd
    @property
    def base(self):
        return re.sub(r'_(e32|e64|dpp|sdwa)$', '', self.mn)
    def cost(self):
        if self.kind == 'valu': return 2 if self.base in TRANS else 1
        return 0.5 if self.kind in ('salu', 'ctl') else 1

class State:
    def __init__(self):
        self.lg = []
        self.vm = []
        self.hist = []
        self.pos = 0
    def clone(self):
        s = State(); s.lg = list(self.lg); s.vm = list(self.vm); s.hist = list(self.hist); s.pos = self.pos
        return s

class Emitter:
    def __init__(self):
        self.out = []; self.st = State(); self.nops = 0; self.log = []
    def raw(self, text):
        self.out.append(text)
    def label(self, name, reset=True):
        self.out.append(name + ':')
    def comment(self, c): self.out.append('; ' + c)
    def _push(self, ins, states=1):
        self.out.append('  ' + ins.text)
        self.st.hist.append((ins, self.st.pos)); self.st.pos += states
        if len(self.st.hist) > 40: self.st.hist.pop(0)
    def nop(self, n):
        while n > 0:
            k = min(n, 16); self._push(Ins(f's_nop {k-1}'), k); n -= k; self.nops += k
    def wait(self, vm=None, lg=None):
        st = self.st
        parts = []
        if vm is not None:
            vm = min(vm, 63); parts.append(f'vmcnt({vm})')
            keep = []; c = 0
            for e in reversed(st.vm):
                if not e[2]:
                    if c >= vm: break
                    c += 1
                elif c >= vm: break
                keep.append(e)
            st.vm = list(reversed(keep))
        if lg is not None:
            lg = min(lg, 15); parts.append(f'lgkmcnt({lg})')
            st.lg = st.lg[len(st.lg) - lg:] if lg < len(st.lg) else st.lg
            if lg == 0: st.lg = []
        self._push(Ins('s_waitcnt ' + ' '.join(parts)))
    def vm_after(self, idx):
        return sum(1 for e in self.st.vm[idx + 1:] if not e[2])
    def wait_tag(self, tags, lg=None):
        tags = set(tags) if not isinstance(tags, str) else {tags}
        idx = -1
        for i, e in enumerate(self.st.vm):
            if e[1] in tags: idx = i
        if idx >= 0: self.wait(vm=self.vm_after(idx), lg=lg if (lg is not None and len(self.st.lg) > lg) else None)
        elif lg is not None and len(self.st.lg) > lg: self.wait(lg=lg)
    def wait_lds_all(self):
        if self.st.lg: self.wait(lg=0)
    def op(self, text, tag=None, opt=False):
        for line in text.split('\n'):
            line = line.strip()
            if line: self._op(Ins(line, tag, opt))
    def _op(self, ins):
        st = self.st
        touched = set(ins.rd) | set(ins.wr)
        need_lg = None; need_vm = None
        for i, e in enumerate(st.lg):
            if e[0] & touched: need_lg = len(st.lg) - 1 - i
        for i, e in enumerate(st.vm):
            if e[0] & touched: need_vm = self.vm_after(i)
        if need_lg is not None or need_vm is not None: self.wait(vm=need_vm, lg=need_lg)
        need = 0
        rd = set(ins.rd); wr = set(ins.wr)
        for p, pos in st.hist:
            dist = st.pos - pos - (1 if p.mn != 's_nop' else 0)
            if p.mn == 's_nop': continue
            dist = st.pos - pos - 1
            req = 0
            pw = set(p.wr)
            if p.kind == 'valu':
                vw = {r for r in pw if r[0] == 'v'}; sw = {r for r in pw if r[0] == 's' or r == ('x', 'vcc')}
                if ins.kind == 'mfma' and vw & rd: req = max(req, 2)
                if ins.kind == 'valu':
                    if ins.mn.startswith('v_permlane') and vw & rd: req = max(req, 2)
                    if ins.mn.startswith('v_read') and vw & rd: req = max(req, 1)
                    if '_dpp' in ins.mn and vw & rd: req = max(req, 2)
                    if p.base in TRANS and vw & rd and ins.base not in TRANS: req = max(req, 1)
                    if p.base in TRANS and vw & rd and ins.base in TRANS: req = max(req, 1)
                    if sw & rd: req = max(req, 2)
                    if '_sdwa' in p.mn and vw & (rd | wr): req = max(req, 1)
                if p.mn.startswith('v_dot2') and vw & (rd | wr):
                    if ins.mn == p.mn and not (vw & (set(ins.rd[:-1]))): pass
                    else: req = max(req, 3)
                if p.base in TRANS and vw & rd and ins.kind in ('mfma', 'ds', 'vmem'): req = max(req, 2)
                if ins.kind == 'vmem' and sw & rd: req = max(req, 5)
                if ins.kind in ('salu', 'smem') and sw & rd: req = max(req, 3)
                if ins.kind == 'ctl' and sw & rd: req = max(req, 3)
            elif p.kind == 'mfma':
                big = p.passes == 8
                if ins.kind == 'mfma':
                    ab = rd - set(ins.mfC) if not (set(ins.mfC) & set(ins.rd[:8])) else rd
                    ab = set(ins.rd[:len(ins.rd) - len(ins.mfC)])
                    if pw & ab: req = max(req, 12 if big else 8)
                    c = set(ins.mfC)
                    if pw & c and not (c == pw and ins.passes == p.passes): req = max(req, 10 if big else 6)
                    if pw & wr and not (pw & c): req = max(req, 12 if big else 8)
                elif ins.kind in ('valu', 'vmem', 'ds'):
                    if pw & (rd | wr): req = max(req, 12 if big else 8)
                    if set(p.mfC) & wr: req = max(req, 7 if big else 3)
            elif p.kind == 'salu':
                if ('x', 'm0') in pw and ins.lds_dma: req = max(req, 1)
            elif p.kind == 'vmem':
                if p.wide and (set(p.rd) & wr) and ins.kind != 'salu': req = max(req, 2)
            if req > dist: need = max(need, req - dist)
        if need: self.nop(need)
        self._push(ins)
        if ins.kind == 'ds':
            st.lg.append((set(ins.wr), ins.tag))
        elif ins.kind == 'vmem':
            st.vm.append((set(ins.wr), ins.tag, ins.opt))
            assert sum(1 for e in st.vm) <= 63, 'vmcnt overflow'
    def begin_opt(self):
        return self.st.pos
    def end_opt(self, p0):
        self.st.hist = [(i, min(p, p0 - 1) if p >= p0 else p) for (i, p) in self.st.hist]
        self.st.pos = p0
    def text(self):
        return '\n'.join(self.out) + '\n'
```

```python
import sys, struct
from emit import Emitter, Ins

KNAME = "recurrent_scan__linear_kernel_hedgehog__geglu_ffn__prompt_kernel"
def fbits(x): return "0x%08x" % struct.unpack('<I', struct.pack('<f', x))[0]

class Cfg:
    stamps = False
    stop = None
    htab = [0, 1, 3, 5, 7, 8, 10, 12, 2, 4, 6, 9, 11, 13, 14, 15]
    g2 = 9
    g3 = 23
    red_blk = 2
    spin = 1 << 20

WS_FK, WS_FR, WS_FH1, WS_FH2, WS_FO = 0, 16 * 128, 32 * 128, 48 * 128, 64 * 128
WS_KVP = 0x10000
WS_KVF = 0x210000
WS_HF = 0x300000
WS_DBG = 0x1000000
WS_SIZE = 0x1400000
SLOT = 8192
NSLOT = 19
L_SCR = NSLOT * SLOT
L_ZERO = L_SCR
L_CSX = L_SCR + 512
L_STAT = L_SCR + 2560
L_WPK = L_SCR + 4608
L_DUMMY = L_SCR + 6656
LDS_BYTES = 163840
S_X, S_WQ, S_WG, S_WU, S_WD, S_WO, S_WP, S_OUT, S_WS, S_DBG = 4, 8, 12, 16, 20, 24, 28, 32, 36, 40
sRB, sJ, sH, sW, sN, sHALF, sRT, sCT, sQI, sJQ, sNONCE, sROLE = 70, 71, 72, 73, 74, 75, 76, 77, 78, 79, 80, 81
sT0, sT1, sT2, sT3, sSO, sSPIN, sW1K, sQOFF = 82, 83, 84, 85, 86, 87, 88, 89
sLO = 100
S_STAMP = 44
XF = 144; ACC0 = 80; ACC1 = 112; FR = 64; CSA = 56; BSEL = 52; CA_G = 48; CA_U = 50; CB = 46; WPH = 38
vC1, vC0, vSD2, vRS, vCE, vMASK = 37, 36, 35, 34, 33, 32
vTA = 28; vTB = 24; vXA = 20; vKA = 16
vDX, vDKV, vDGU, vDQB, vHS, vCSW, vCSR, vPHW = 15, 14, 13, 12, 11, 10, 9, 8
vDW2 = 12
vLANE = 7
def v(a, n=1): return f"v{a}" if n == 1 else f"v[{a}:{a+n-1}]"
def srd(a): return f"s[{a}:{a+3}]"

VERB = False
class Item:
    def __init__(self, name, nslots, kind, **kw):
        self.name = name; self.nslots = nslots; self.kind = kind; self.slot = None; self.issued = False
        self.__dict__.update(kw)
    @property
    def addr(self): return self.slot * SLOT

class Planner:
    def __init__(self, items):
        self.free = [True] * NSLOT; self.q = list(items); self.by = {i.name: i for i in items}
    def clone(self):
        import copy; return copy.deepcopy(self)
    def add(self, items):
        self.q += items
        for i in items: self.by[i.name] = i
    def release(self, *names):
        for n in names:
            it = self.by[n]; assert it.slot is not None, n
            for s in range(it.slot, it.slot + it.nslots): self.free[s] = True
    def take(self, limit=99):
        out = []
        while self.q and len(out) < limit:
            it = self.q[0]; pos = None
            for s in range(NSLOT - it.nslots + 1):
                if all(self.free[s:s + it.nslots]):
                    if it.nslots == 1:
                        iso = not ((s > 0 and self.free[s - 1]) or (s + 1 < NSLOT and self.free[s + 1]))
                        if pos is None: pos = s
                        if iso: pos = s; break
                    else: pos = s; break
            if pos is None: break
            it.slot = pos
            for s in range(pos, pos + it.nslots): self.free[s] = False
            self.q.pop(0); out.append(it)
            if VERB: print('  alloc', it.name, pos)
        return out

class Gen:
    def __init__(self, cfg):
        self.c = cfg; self.e = Emitter(); self.fill = []; self.dmaq = []; self.nstamp = 0; self.lab = 0
        self.base = {}
        self.seen = set()
    def op(self, t, tag=None, opt=False):
        if tag: self.seen.add(tag)
        self.e.op(t, tag, opt)
    def newlab(self, p):
        self.lab += 1; return f"L_{p}_{self.lab}"
    def stamp(self, k):
        if self.c.stamps: self.op(f"s_memtime s[{S_STAMP+2*k}:{S_STAMP+2*k+1}]")
    def slots(self, budget, dma=1):
        for _ in range(dma):
            if self.dmaq:
                for t, tag in self.dmaq.pop(0): self.op(t, tag)
        while self.fill and budget > 0:
            f = self.fill.pop(0)
            if callable(f): f(); continue
            t, tag = f if isinstance(f, tuple) else (f, None)
            ins = Ins(t); budget -= ins.cost()
            self.op(t, tag)
    def flush(self, dma=True):
        while (dma and self.dmaq) or self.fill: self.slots(1000, 1 if dma else 0)
    def flush_dma(self):
        while self.dmaq: self.slots(0, 1)
    def window(self, grp, regs, lo, hi):
        b = self.base[grp]
        if lo >= b and hi - b <= 65536: return b
        nb = lo
        for cand in (0, 49152, 98304):
            if cand <= lo and hi - cand <= 65536: nb = cand
        d = nb - b
        for r in regs:
            self.op(f"v_add_u32 v{r}, {d & 0xffffffff:#x}, v{r}")
        self.base[grp] = nb
        return nb
    def dma_ops(self, it, helper=False):
        k = it.kind; A = it.addr; L = []
        def one(m0add, so, vreg, s, flags=""):
            so_s = so if isinstance(so, str) else None
            seq = [(f"s_add_u32 m0, s{sW1K}, {m0add}", None)]
            if so_s: seq.append((so_s, None))
            else: seq.append((f"s_mov_b32 s{sSO}, {so}", None))
            seq.append((f"buffer_load_dwordx4 v{vreg}, {srd(s)}, s{sSO} offen {flags} lds".replace("  ", " "), it.name))
            L.append(seq)
        if k == 'X':
            one(A, 128 * it.c, vDX, S_X); one(A + 8192, 128 * it.c + 64 * 896, vDX, S_X)
        elif k == 'KV':
            one(A, it.c * 64 * 2688, vDKV, S_WQ)
        elif k == 'GU':
            so = it.c * 64 * 3584 + it.p * 128
            one(A, so, vDGU, S_WG); one(A + 8192, so, vDGU, S_WU)
        elif k == 'Q':
            so = f"s_add_u32 s{sSO}, s{sQOFF}, {it.c * 64 * 2688 + it.p * 224}"
            one(A, so, vDGU, S_WQ); one(A + 8192, so, vDQB, S_WQ)
        elif k == 'W2':
            u = it.u
            s = S_WD if u < 28 else S_WO
            row = 128 * u if u < 14 else (128 * (u - 14) + 64 if u < 28 else 56 * (u - 28))
            one(A, row * 896, vDW2, s)
            if helper:
                one(A - 4096, row * 896, 16, s)
        elif k == 'WPQ':
            L.append([(f"s_mul_i32 s{sSO}, s{sJQ}, {8*1568}", None), (f"s_add_u32 s{sSO}, s{sSO}, s{sW1K}", None), (f"s_add_u32 m0, s{sW1K}, {A}", None),
                      (f"s_nop 0", None), (f"buffer_load_dwordx4 v{vLANE}, {srd(S_WP)}, s{sSO} offen lds", it.name),
                      (f"s_add_u32 m0, s{sW1K}, {A+8192}", None), (f"s_add_u32 s{sSO}, s{sSO}, 8192", None),
                      (f"buffer_load_dwordx4 v{vLANE}, {srd(S_WP)}, s{sSO} offen lds", it.name)])
        elif k == 'RES':
            pass
        else: raise ValueError(k)
        return L
    def issue(self, pl, limit=99, helper=False, skip=False):
        for it in pl.take(limit):
            if not skip: self.dmaq += self.dma_ops(it, helper)
    def barrier(self, need=(), lg0=False):
        for n in need:
            assert all(not any(tag == n for _, tag in seq) for seq in self.dmaq), f"{n} not yet issued"
            assert n in self.seen, f"{n} never issued"
        self.e.wait_tag(list(need), lg=0 if lg0 else None)
        self.op("s_barrier")
    def nonce_load(self):
        self.op(f"v_mov_b32 v5, 0")
        self.op(f"buffer_load_dword v{vC0}, v5, {srd(S_DBG)}, 0 offen sc1", tag='nonce')
    def nonce_check(self):
        lab = self.newlab("nonce")
        self.op(f"v_readfirstlane_b32 s{sNONCE}, v{vC0}")
        self.op(f"s_mov_b32 s{sSPIN}, {self.c.spin}")
        self.op(f"s_cmp_lg_u32 s{sNONCE}, 0")
        self.op(f"s_cbranch_scc1 {lab}_x")
        self.e.label(lab)
        r = self.e.raw
        r(f"  v_mov_b32 v5, 0")
        r(f"  buffer_load_dword v6, v5, {srd(S_DBG)}, 0 offen sc1")
        r(f"  s_waitcnt vmcnt(0)")
        r(f"  v_readfirstlane_b32 s{sNONCE}, v6")
        r(f"  s_sub_u32 s{sSPIN}, s{sSPIN}, 1")
        r(f"  s_cbranch_scc1 {lab}_x")
        r(f"  s_nop 2")
        r(f"  s_cmp_eq_u32 s{sNONCE}, 0")
        r(f"  s_cbranch_scc1 {lab}")
        self.e.label(lab + "_x")
        self.e.nop(3)
    def poll(self, line_sexpr, nwords, first=0, t0=5):
        lab = self.newlab("poll")
        self.op(line_sexpr)
        self.op(f"v_lshrrev_b32 v{t0}, 4, v{vLANE}")
        self.op(f"v_min_u32 v{t0}, {nwords-1}, v{t0}")
        self.op(f"v_lshlrev_b32 v{t0}, 2, v{t0}")
        self.op(f"s_mov_b32 s{sSPIN}, {self.c.spin}")
        self.e.nop(2)
        self.e.label(lab)
        self.e.raw(f"  buffer_load_dword v{t0+1}, v{t0}, {srd(S_WS)}, s{sT1} offen offset:{4*first} sc1")
        self.e.raw(f"  s_sub_u32 s{sSPIN}, s{sSPIN}, 1")
        self.e.raw(f"  s_cbranch_scc1 {lab}_x")
        self.e.raw(f"  s_waitcnt vmcnt(0)")
        self.e.raw(f"  v_cmp_ne_u32 vcc, s{sNONCE}, v{t0+1}")
        self.e.raw(f"  s_nop 4")
        self.e.raw(f"  s_cbranch_vccnz {lab}")
        self.e.label(lab + "_x")
        self.e.raw(f"  s_waitcnt vmcnt(0)")
        self.e.st.vm = []
        self.e.nop(2)
    def flag(self, off_sexpr, t0=5):
        lab = self.newlab("flag")
        self.op(f"s_cmp_lg_u32 s{sN}, 0")
        self.op(f"s_cbranch_scc1 {lab}")
        p0 = self.e.begin_opt()
        self.op(off_sexpr)
        self.op(f"v_mov_b32 v{t0}, s{sNONCE}")
        self.op(f"v_lshl_or_b32 v{t0+1}, v{vLANE}, 24, 0")
        self.op(f"buffer_store_dword v{t0}, v{t0+1}, {srd(S_WS)}, s{sT1} offen sc1", tag='flag', opt=True)
        self.e.end_opt(p0)
        self.e.label(lab)

    def prologue(self):
        c = self.c; op = self.op
        op("s_cmp_ge_u32 s2, 256\ns_cbranch_scc1 L_end")
        op("s_load_dwordx16 s[48:63], s[0:1], 0\ns_load_dwordx4 s[64:67], s[0:1], 64\ns_load_dwordx2 s[68:69], s[0:1], 80")
        if c.stamps: op("s_memrealtime s[90:91]\ns_memtime s[92:93]")
        op(f"v_lshrrev_b32 v1, 6, v0\nv_and_b32 v0, 63, v0\nv_readfirstlane_b32 s{sW}, v1\nv_lshlrev_b32 v{vLANE}, 4, v0")
        op(f"s_and_b32 s{sT0}, s2, 7\ns_lshr_b32 s{sT1}, s2, 3")
        op(f"s_mul_i32 s{sT2}, s{sT1}, 37\ns_lshr_b32 s{sT2}, s{sT2}, 8")
        op(f"s_mul_i32 s{sT3}, s{sT2}, 7\ns_sub_u32 s{sCT}, s{sT1}, s{sT3}")
        op(f"s_lshl_b32 s{sRT}, s{sT0}, 2\ns_add_u32 s{sRT}, s{sRT}, s{sT2}")
        op(f"s_lshl_b32 s{sQI}, s{sT0}, 2\ns_add_u32 s{sQI}, s{sQI}, s{sT1}\ns_sub_u32 s{sQI}, s{sQI}, 28")
        op(f"s_mul_i32 s{sT2}, s{sT0}, 28\ns_add_u32 s{sT2}, s{sT2}, s{sT1}")
        op(f"s_cmp_ge_u32 s{sT2}, 112\ns_cselect_b32 s{sT3}, 112, 0\ns_cselect_b32 s{sRB}, 8, 0\ns_sub_u32 s{sT2}, s{sT2}, s{sT3}")
        op(f"s_lshr_b32 s{sJ}, s{sT2}, 3\ns_and_b32 s{sT2}, s{sT2}, 7\ns_add_u32 s{sRB}, s{sRB}, s{sT2}")
        op(f"s_mov_b32 s{sJQ}, 0\ns_mov_b32 s{sROLE}, 0")
        op(f"s_cmp_lt_u32 s{sT1}, 28\ns_cbranch_scc1 L_role_done")
        op(f"s_and_b32 s{sT2}, s{sQI}, 15\ns_lshr_b32 s{sJQ}, s{sT2}, 3\ns_and_b32 s{sT2}, s{sT2}, 7")
        op(f"s_lshr_b32 s{sRB}, s{sT0}, 2\ns_lshl_b32 s{sRB}, s{sRB}, 3\ns_add_u32 s{sRB}, s{sRB}, s{sT2}")
        op(f"s_add_u32 s{sJ}, s{sJQ}, 14\ns_mov_b32 s{sROLE}, 1")
        self.e.label("L_role_done")
        h = 0
        for j, x in enumerate(c.htab): h |= x << (4 * j)
        op(f"s_mov_b32 s94, {h & 0xffffffff:#x}\ns_mov_b32 s95, {h >> 32:#x}\ns_lshl_b32 s{sT0}, s{sJ}, 2\ns_lshr_b64 s[94:95], s[94:95], s{sT0}\ns_and_b32 s{sH}, s94, 15")
        op(f"s_and_b32 s{sN}, s{sW}, 3\ns_lshr_b32 s{sHALF}, s{sW}, 2\ns_lshl_b32 s{sW1K}, s{sW}, 10")
        op(f"s_mul_i32 s{sQOFF}, s{sJQ}, 448")
        op("v_lshrrev_b32 v1, 3, v0\nv_and_b32 v2, 7, v0")
        op(f"s_lshl_b32 s{sT0}, s{sW}, 3\nv_add_u32 v3, s{sT0}, v1")
        op(f"v_bfe_u32 v4, v3, 1, 3\nv_xor_b32 v4, v4, v2\nv_lshlrev_b32 v4, 4, v4")
        op(f"s_lshl_b32 s{sT1}, s{sRB}, 7\nv_add_u32 v5, s{sT1}, v3\nv_mul_u32_u24 v5, 896, v5\nv_add_u32 v{vDX}, v5, v4")
        op(f"v_lshrrev_b32 v4, 2, v0\ns_lshl_b32 s{sT0}, s{sN}, 4\nv_add_u32 v4, s{sT0}, v4\nv_mul_u32_u24 v4, 2688, v4")
        op(f"s_mul_i32 s{sT0}, s{sH}, 56\ns_and_b32 s{sT2}, s{sT0}, 8\ns_and_b32 s{sT0}, s{sT0}, 0xfff0")
        op(f"s_mul_i32 s{sT1}, s{sHALF}, 896\ns_add_u32 s{sT0}, s{sT0}, s{sT1}\ns_add_u32 s{sT0}, s{sT0}, 896")
        op(f"v_and_b32 v5, 3, v0\nv_lshlrev_b32 v5, 4, v5\nv_add3_u32 v{vDKV}, v4, v5, s{sT0}")
        op(f"s_mov_b32 s96, s{sT2}")
        self.e.raw("  s_waitcnt lgkmcnt(0)")
        for (s, k, size) in ((S_X, 48, 1835008), (S_WQ, 50, 1204224), (S_WP, 52, 25088), (S_WO, 54, 401408), (S_WG, 58, 1605632),
                             (S_WU, 60, 1605632), (S_WD, 62, 1605632), (S_OUT, 64, 1835008), (S_DBG, 66, 256), (S_WS, 68, WS_SIZE)):
            op(f"s_mov_b32 s{s}, s{k}\ns_mov_b32 s{s+1}, s{k+1}\ns_mov_b32 s{s+2}, {size}\ns_mov_b32 s{s+3}, 0x20000")
            if s == S_WQ:
                self.pl = Planner(sum(([Item(f"X{c_}", 2, 'X', c=c_), Item(f"KV{c_}", 1, 'KV', c=c_)] for c_ in range(7)), []))
                self.issue(self.pl); n0 = 3
                for _ in range(n0): self.slots(0, 1)
        op(f"s_mul_i32 s{sT0}, s{sH}, 1568\ns_lshl_b32 s{sT1}, s{sW}, 8\ns_add_u32 s{sT0}, s{sT0}, s{sT1}\ns_add_u32 m0, s{sT1}, {L_WPK}")
        op(f"v_lshlrev_b32 v4, 2, v0")
        op(f"buffer_load_dword v4, {srd(S_WP)}, s{sT0} offen lds", tag='WPK')
        self.flush_dma()
        op(f"s_or_b32 s{sT0}, s2, s{sW}\ns_cmp_lg_u32 s{sT0}, 0\ns_cbranch_scc1 L_nononce")
        op("s_memrealtime s[98:99]")
        self.e.raw("  s_waitcnt lgkmcnt(0)")
        op(f"s_or_b32 s98, s98, 1\nv_mov_b32 v4, s98\nv_lshlrev_b32 v5, 12, v0")
        op(f"buffer_store_dword v4, v5, {srd(S_DBG)}, 0 offen sc1", tag='flag', opt=True)
        self.e.label("L_nononce")
        op("v_bfe_u32 v4, v1, 1, 1\nv_lshlrev_b32 v4, 2, v4\nv_xor_b32 v4, v4, v2")
        op(f"v_lshlrev_b32 v5, 4, v4\nv_mul_u32_u24 v6, 896, v3\ns_lshl_b32 s{sT0}, s{sCT}, 7\nv_add3_u32 v{vDW2}, v5, v6, s{sT0}")
        op(f"s_cmp_eq_u32 s{sROLE}, 0\ns_cbranch_scc1 L_vo_ffn")
        op(f"v_mul_u32_u24 v6, 2688, v3\nv_add_u32 v{vDGU}, v5, v6\nv_add_u32 v4, 8, v4\nv_min_u32 v4, 13, v4\nv_lshl_add_u32 v{vDQB}, v4, 4, v6")
        op("s_branch L_vo_done")
        self.e.label("L_vo_ffn")
        op(f"v_mul_u32_u24 v6, 3584, v3\ns_lshl_b32 s{sT0}, s{sJ}, 8\nv_add3_u32 v{vDGU}, v5, v6, s{sT0}")
        self.e.label("L_vo_done")
        op("v_lshrrev_b32 v1, 4, v0\nv_and_b32 v2, 15, v0\nv_lshrrev_b32 v3, 5, v0\nv_and_b32 v4, 31, v0")
        op(f"s_lshl_b32 s{sT0}, s{sHALF}, 1\ns_add_u32 s{sT0}, s{sT0}, s{sN}")
        op(f"s_lshl_b32 s{sT1}, s{sN}, 5\nv_add_u32 v5, s{sT1}, v4\nv_bfe_u32 v6, v5, 1, 3\nv_xor_b32 v6, v6, v3\nv_lshlrev_b32 v6, 4, v6\nv_lshl_add_u32 v6, v5, 7, v6")
        for i in range(4):
            op(f"s_add_u32 s{sT1}, s{sT0}, {i}\ns_and_b32 s{sT1}, s{sT1}, 3\ns_lshl_b32 s{sT1}, s{sT1}, 5\nv_xor_b32 v{vXA+i}, s{sT1}, v6")
        op(f"v_bfe_u32 v6, v4, 2, 1\nv_bfe_u32 v{vPHW}, v4, 3, 1")
        op(f"s_cmp_eq_u32 s{sHALF}, 0\ns_cbranch_scc1 L_ph_k")
        op(f"v_lshl_or_b32 v6, v{vPHW}, 1, v6\nv_lshlrev_b32 v6, 4, v6\nv_lshl_add_u32 v6, v5, 6, v6\nv_add_u32 v6, 16384, v6")
        op("s_branch L_ph_done")
        self.e.label("L_ph_k")
        op(f"v_lshl_or_b32 v6, v{vPHW}, 2, v6\nv_and_b32 v{vPHW}, 2, v4\nv_or_b32 v6, v6, v{vPHW}\nv_lshlrev_b32 v6, 4, v6\nv_lshl_add_u32 v6, v5, 7, v6")
        self.e.label("L_ph_done")
        op(f"v_lshl_add_u32 v{vPHW}, v3, 3, v6")
        op("v_and_b32 v5, 1, v1\nv_lshlrev_b32 v5, 5, v5\nv_and_b32 v6, 3, v2\nv_lshl_add_u32 v5, v6, 3, v5")
        op("v_lshrrev_b32 v6, 2, v2\nv_lshl_add_u32 v6, v3, 3, v6")
        op(f"v_min_u32 v{vTB}, 48, v5\nv_lshl_add_u32 v{vTB+1}, v6, 6, v{vTB}")
        op(f"s_lshl_b32 s{sT1}, s{sHALF}, 12\ns_add_u32 s{sT1}, s{sT1}, s96")
        for i in range(4):
            op(f"s_add_u32 s{sT2}, s{sT0}, {i}\ns_and_b32 s{sT2}, s{sT2}, 3\ns_lshl_b32 s{sT2}, s{sT2}, 10\ns_add_u32 s{sT2}, s{sT2}, s{sT1}\nv_add_u32 v{vKA+i}, s{sT2}, v{vTB+1}")
        op(f"v_and_b32 v{vTB+1}, 8, v2\nv_lshlrev_b32 v{vTB+1}, 3, v{vTB+1}")
        op(f"s_cmp_eq_u32 s{sROLE}, 0\ns_cbranch_scc1 L_ta_ffn")
        for a, dst in ((0, vTA), (1, vTB)):
            t1, t2 = (vC0, vC1)
            op(f"s_mul_i32 s{sT1}, s{sHALF}, 112\ns_add_u32 s{sT1}, s{sT1}, {56*a}\nv_min_u32 v{t1}, 48, v5\nv_add_u32 v{t1}, s{sT1}, v{t1}")
            op(f"v_lshrrev_b32 v{t2}, 7, v{t1}\nv_lshlrev_b32 v{t2}, 13, v{t2}\nv_and_b32 v{t1}, 127, v{t1}\nv_and_b32 v{vRS}, 8, v2\nv_lshlrev_b32 v{vRS}, 3, v{vRS}\nv_xor_b32 v{t1}, v{t1}, v{vRS}")
            op(f"v_add_u32 v{t1}, v{t1}, v{t2}\nv_lshl_add_u32 v{t1}, v6, 7, v{t1}")
            for i in range(4):
                op(f"s_add_u32 s{sT2}, s{sT0}, {i}\ns_and_b32 s{sT2}, s{sT2}, 3\ns_lshl_b32 s{sT2}, s{sT2}, 11\nv_add_u32 v{dst+i}, s{sT2}, v{t1}")
        op("s_branch L_ta_done")
        self.e.label("L_ta_ffn")
        op(f"s_lshl_b32 s{sT1}, s{sHALF}, 6\nv_add_u32 v{vC0}, s{sT1}, v5\nv_xor_b32 v{vC0}, v{vC0}, v{vTB+1}\nv_lshl_add_u32 v{vC0}, v6, 7, v{vC0}")
        for i in range(4):
            op(f"s_add_u32 s{sT2}, s{sT0}, {i}\ns_and_b32 s{sT2}, s{sT2}, 3\ns_lshl_b32 s{sT2}, s{sT2}, 11\nv_add_u32 v{vTA+i}, s{sT2}, v{vC0}")
        self.e.label("L_ta_done")
        self.base = {'TA': 0, 'XA': 0, 'KA': 0}
        op(f"v_and_b32 v5, 1, v1\nv_cmp_eq_u32 vcc, v5, v2\nv_mov_b32 v6, 0x3f803f80\nv_cndmask_b32 v{BSEL}, 0, v6, vcc")
        op(f"v_mov_b32 v{BSEL+1}, v{BSEL}\nv_mov_b32 v{BSEL+2}, v{BSEL}\nv_mov_b32 v{BSEL+3}, v{BSEL}")
        op(f"s_lshl_b32 s{sT1}, s{sHALF}, 10\ns_lshl_b32 s{sT2}, s{sN}, 7\ns_add_u32 s{sT2}, s{sT2}, s{sT1}\ns_add_u32 s{sT2}, s{sT2}, {L_CSX}")
        op(f"v_lshlrev_b32 v5, 6, v2\nv_lshl_add_u32 v5, v1, 4, v5\nv_add_u32 v5, s{sT2}, v5\nv_mov_b32 v6, {L_DUMMY}\nv_cmp_gt_u32 vcc, 2, v2\nv_cndmask_b32 v{vCSW}, v6, v5, vcc")
        op(f"s_add_u32 s{sT1}, s{sT1}, {L_CSX}\nv_lshlrev_b32 v5, 2, v4\nv_add_u32 v{vCSR}, s{sT1}, v5")
        op(f"v_cmp_eq_u32 vcc, 0, v3\nv_mov_b32 v6, 1.0\nv_cndmask_b32 v{vMASK}, 0, v6, vcc")
        op(f"v_mov_b32 v{CA_G+1}, 0\nv_mov_b32 v{CA_U+1}, 0\nv_mov_b32 v{CB+1}, 0")
        op(f"s_lshl_b32 s{sT1}, s{sRB}, 2\ns_add_u32 s{sT1}, s{sT1}, s{sN}\ns_mul_i32 s{sT1}, s{sT1}, {144*1024}\ns_add_u32 s{sT1}, s{sT1}, {WS_HF}\nv_add_u32 v{vHS}, s{sT1}, v{vLANE}")
        op(f"s_mov_b32 s{sLO}, -1\ns_mov_b32 s{sLO+1}, 0")

    def xf(self, c, i): return XF + (4 * c + i) * 4
    def blockA(self, c, pl):
        op = self.op
        X = pl.by[f"X{c}"]; KV = pl.by[f"KV{c}"]
        self.flush_dma()
        self.barrier([X.name, KV.name] + (['WPK'] if c == 0 else []), lg0=True)
        if c == 0: self.stamp(0)
        if c > 0: pl.release(f"X{c-1}", f"KV{c-1}"); self.issue(pl)
        bx = self.window('XA', range(vXA, vXA + 4), X.addr, X.addr + 16384)
        bk = self.window('KA', range(vKA, vKA + 4), KV.addr, KV.addr + 8192)
        for i in range(4):
            op(f"ds_read_b128 {v(self.xf(c,i),4)}, v{vXA+i} offset:{X.addr-bx}")
            op(f"ds_read_b64_tr_b16 {v(FR+4*i,2)}, v{vKA+i} offset:{KV.addr-bk}")
            op(f"ds_read_b64_tr_b16 {v(FR+4*i+2,2)}, v{vKA+i} offset:{KV.addr-bk+256}")
        self.slots(0, 2)
        if c == 3: self.nonce_load()
        for i in range(2):
            for r in range(4):
                x = self.xf(c, i) + r
                if c == 0 and i == 0 and r < 2:
                    op(f"v_mov_b32 v{1+r}, 0\nv_mov_b32 v{3+r}, 0")
            for r in range(4):
                x = self.xf(c, i) + r
                op(f"v_dot2c_f32_bf16 v{1+r%2}, 0x3f803f80, v{x}")
                op(f"v_dot2c_f32_bf16 v{3+r%2}, v{x}, v{x}")
        for i in range(4):
            cin = "0" if (c == 0 and i == 0) else v(ACC1, 16)
            op(f"v_mfma_f32_32x32x16_bf16 {v(ACC1,16)}, {v(FR+4*i,4)}, {v(self.xf(c,i),4)}, {cin}")
            if i == 0:
                op(f"v_mfma_f32_16x16x32_bf16 {v(CSA,4)}, {v(FR,4)}, {v(BSEL,4)}, {'0' if c == 0 else v(CSA,4)}")
            self.slots(0, 2)
    def pre_bx(self):
        op = self.op
        op(f"v_add_f32 v2, v1, v2\nv_add_f32 v3, v3, v4\nv_mov_b32 v1, v2\nv_mov_b32 v4, v3")
        op(f"ds_write_b128 v{vCSW}, {v(CSA,4)}")
        op(f"v_permlane32_swap_b32 v2, v1\nv_permlane32_swap_b32 v3, v4")
        op(f"v_bfe_u32 v5, v{vLANE}, 4, 5\ns_lshl_b32 s{sT0}, s{sN}, 8\ns_add_u32 s{sT0}, s{sT0}, {L_STAT}\nv_lshl_add_u32 v5, v5, 3, s{sT0}")
        op(f"s_lshl_b32 s{sT1}, s{sHALF}, 10\nv_add_u32 v6, s{sT1}, v5\ns_xor_b32 s{sT1}, s{sT1}, 1024\nv_add_u32 v15, s{sT1}, v5")
        op(f"v_add_f32 v2, v2, v1\nv_add_f32 v3, v3, v4")
        op(f"ds_write_b64 v6, v[2:3]")
    def cs_read(self, b, t):
        return [f"ds_read2_b32 {v(t,2)}, v{vCSR} offset0:{b*128} offset1:{b*128+32}",
                f"ds_read2_b32 {v(t+2,2)}, v{vCSR} offset0:{b*128+64} offset1:{b*128+96}"]
    def cs_build(self, t, dst):
        return [f"v_add_f32 v{t}, v{t}, v{t+1}", f"v_add_f32 v{t+2}, v{t+2}, v{t+3}", f"v_add_f32 v{t}, v{t}, v{t+2}",
                f"v_mul_f32 v{t}, v{t}, v{vMASK}", f"v_cvt_pk_bf16_f32 v{t+1}, v{t}, v{t}", f"v_lshlrev_b32 v{t+1}, 16, v{t+1}",
                f"v_sub_f32 v{t+2}, v{t}, v{t+1}", f"v_cvt_pk_bf16_f32 v{dst}, v{t+1}, v{t+2}"]
    def corr(self, acc, ca):
        return [f"v_mfma_f32_32x32x8_bf16 {v(acc,16)}, {v(ca,2)}, {v(CB,2)}, {v(acc,16)}"]
    def stats_finish(self, ffn):
        F = [f"ds_read_b64 v[16:17], v15"] + self.cs_read(0, 20)
        F += [f"v_add_f32 v2, v2, v16", f"v_add_f32 v3, v3, v17",
              f"v_mul_f32 v2, {fbits(1/448)}, v2", f"v_mul_f32 v3, {fbits(1/448)}, v3",
              f"v_cvt_pk_bf16_f32 v{CB}, -v2, -v2",
              f"v_fma_f32 v3, -v2, v2, v3", f"v_max_f32 v3, 0, v3"]
        F += self.cs_build(20, CA_G)
        F += [f"v_cvt_pk_bf16_f32 v3, v3, v3", f"v_lshlrev_b32 v3, 16, v3"]
        F += self.corr(ACC1, CA_G)
        F += [f"v_add_f32 v3, {fbits(1e-5)}, v3", f"v_cvt_pk_bf16_f32 v3, v3, v3", f"v_lshlrev_b32 v3, 16, v3",
              f"v_sqrt_f32 v3, v3", f"v_cvt_pk_bf16_f32 v3, v3, v3", f"v_lshlrev_b32 v3, 16, v3",
              f"v_rcp_f32 v{vRS}, v3", f"v_mul_f32 v{vSD2}, v3, v3", f"v_mul_f32 v{vCE}, {fbits(1.4426950408889634)}, v{vRS}"]
        if ffn:
            c0 = -2 * 0.7978845608028654 * 1.4426950408889634
            F += [f"v_mul_f32 v{vC0}, {fbits(c0)}, v{vRS}", f"v_mul_f32 v2, v{vRS}, v{vRS}", f"v_mul_f32 v2, v2, v{vC0}", f"v_mul_f32 v{vC1}, {fbits(0.044715)}, v2"]
        return F
    def wphi_addr(self, dst, base):
        return [f"v_bfe_u32 v{dst}, v{vLANE}, 9, 1", f"v_bfe_u32 v1, v{vLANE}, 6, 2", f"v_lshl_add_u32 v{dst}, v{dst}, 2, v1", f"v_mul_u32_u24 v{dst}, 56, v{dst}",
                f"v_bfe_u32 v1, v{vLANE}, 8, 1", f"v_lshlrev_b32 v1, 5, v1", f"v_bfe_u32 v4, v{vLANE}, 4, 2", f"v_lshl_add_u32 v1, v4, 3, v1", f"v_min_u32 v1, 48, v1",
                f"v_add_u32 v{dst}, v{dst}, v1", f"v_add_u32 v{dst}, {base}, v{dst}"]
    def wphi_read(self, areg, off):
        F = [f"ds_read_b64_tr_b16 {v(WPH+2*k,2)}, v{areg} offset:{off+448*k}" for k in range(4)]
        return F
    def wphi_fix(self):
        return [f"v_cndmask_b32 v{WPH+6}, 0, v{WPH+6}, s[{sLO}:{sLO+1}]", f"v_cndmask_b32 v{WPH+7}, 0, v{WPH+7}, s[{sLO}:{sLO+1}]"]
    def feat_front(self, acc, dst, T):
        F = [f"v_cvt_pk_bf16_f32 v{16+j}, v{acc+2*j}, v{acc+2*j+1}" for j in range(8)]
        F += [f"v_mfma_f32_32x32x16_bf16 {v(dst,16)}, {v(WPH,4)}, v[16:19], 0",
              f"v_mfma_f32_32x32x16_bf16 {v(dst,16)}, {v(WPH+4,4)}, v[20:23], {v(dst,16)}"]
        a, b, c_, d = T[:4]
        mx = [f"v_max3_f32 v{a}, v{dst}, v{dst+1}, v{dst+2}"] + [f"v_max3_f32 v{a}, v{a}, v{dst+k}, v{dst+k+1}" for k in range(3, 15, 2)] + [f"v_max_f32 v{a}, v{a}, v{dst+15}"]
        mn = [f"v_min3_f32 v{b}, v{dst}, v{dst+1}, v{dst+2}"] + [f"v_min3_f32 v{b}, v{b}, v{dst+k}, v{dst+k+1}" for k in range(3, 15, 2)] + [f"v_min_f32 v{b}, v{b}, v{dst+15}"]
        G = []
        for x, y in zip(mx, mn): G += [x, y]
        G += [f"v_mov_b32 v{c_}, v{a}", f"v_mov_b32 v{d}, v{b}", f"s_nop 0", f"v_permlane32_swap_b32 v{a}, v{c_}", f"v_permlane32_swap_b32 v{b}, v{d}",
              f"v_max_f32 v{a}, v{a}, v{c_}", f"v_min_f32 v{b}, v{b}, v{d}", f"v_mul_f32 v{a}, -v{a}, v{vCE}".replace("v_mul_f32", "v_mul_f32_e64"), f"v_mul_f32 v{b}, v{b}, v{vCE}"]
        return F, G
    def k_epilogue(self, phslot):
        A = ACC1; P = ACC1 + 16
        T = [1, 2, 3, 4]
        F, G = self.feat_front(A, P, T)
        out = self.wphi_fix() + F + [f"v_add_u32 v{vPHW}, {phslot}, v{vPHW}"] + G
        a, b = 1, 2
        E = []
        for r in range(16):
            E += [f"v_fma_f32 v{A+r}, v{P+r}, v{vCE}, v{a}", f"v_fma_f32 v{P+r}, -v{P+r}, v{vCE}, v{b}"]
            if r >= 1: E += [f"v_exp_f32 v{A+r-1}, v{A+r-1}", f"v_exp_f32 v{P+r-1}, v{P+r-1}"]
        E += [f"v_exp_f32 v{A+15}, v{A+15}", f"v_exp_f32 v{P+15}, v{P+15}"]
        out += E
        S = [f"v_add_f32 v16, v{A}, v{A+1}", f"v_add_f32 v17, v{P}, v{P+1}", f"v_add_f32 v18, v{A+12}, v{A+13}", f"v_add_f32 v19, v{P+12}, v{P+13}"]
        for r in range(2, 12): S += [f"v_add_f32 v16, v16, v{A+r}", f"v_add_f32 v17, v17, v{P+r}"]
        for r in (14, 15): S += [f"v_add_f32 v18, v18, v{A+r}", f"v_add_f32 v19, v19, v{P+r}"]
        S += [f"v_fma_f32 v16, v18, v{vMASK}, v16", f"v_fma_f32 v17, v19, v{vMASK}, v17", "v_mov_b32 v18, v16", "v_mov_b32 v19, v17", "s_nop 0",
              "v_permlane32_swap_b32 v16, v18", "v_permlane32_swap_b32 v17, v19", "v_add_f32 v16, v16, v18", "v_add_f32 v17, v17, v19",
              "v_rcp_f32 v16, v16", "v_rcp_f32 v17, v17", "s_nop 0", f"v_mul_f32 v18, v16, v{vMASK}", f"v_mul_f32 v19, v17, v{vMASK}"]
        out += S
        for sgn, B in ((0, A), (1, P)):
            for q in range(4):
                m = (16 + sgn) if q < 3 else (18 + sgn)
                out += [f"v_mul_f32 v{B+4*q+k}, v{B+4*q+k}, v{m}" for k in range(4)]
                cch = 4 * sgn + q
                if cch: out += [f"v_xor_b32 v{20+cch%4}, {cch<<4}, v{vPHW}"]
                out += [f"v_cvt_pk_bf16_f32 v{B+4*q}, v{B+4*q}, v{B+4*q+1}", f"v_cvt_pk_bf16_f32 v{B+4*q+1}, v{B+4*q+2}, v{B+4*q+3}",
                        f"ds_write_b64 v{(20+cch%4) if cch else vPHW}, {v(B+4*q,2)}"]
        return out
    def v_epilogue(self, phslot):
        A = ACC1
        out = [f"v_add_u32 v{vPHW}, {phslot}, v{vPHW}", f"v_mul_f32 v1, v{vRS}, v{vMASK}", f"v_sub_f32 v2, 1.0, v{vMASK}"]
        for q in range(4):
            for k in range(4):
                r = A + 4 * q + k
                if q < 3: out.append(f"v_mul_f32 v{r}, v{r}, v{vRS}")
                elif k == 0: out.append(f"v_fma_f32 v{r}, v{r}, v1, v2")
                else: out.append(f"v_mul_f32 v{r}, v{r}, v1")
            if q: out += [f"v_xor_b32 v{20+q}, {q<<4}, v{vPHW}"]
            out += [f"v_cvt_pk_bf16_f32 v{A+4*q}, v{A+4*q}, v{A+4*q+1}", f"v_cvt_pk_bf16_f32 v{A+4*q+1}, v{A+4*q+2}, v{A+4*q+3}",
                    f"ds_write_b64 v{(20+q) if q else vPHW}, {v(A+4*q,2)}"]
        return out
    def kv_stage(self, phslot):
        L = vLANE
        out = [f"v_bfe_u32 v1, v{L}, 8, 2", f"v_bfe_u32 v2, v{L}, 6, 2", f"v_lshl_add_u32 v1, v1, 3, v2",
               f"v_bfe_u32 v2, v{L}, 5, 1",
               f"v_bfe_u32 v3, v{L}, 4, 1", f"v_lshlrev_b32 v3, 3, v3",
               f"v_bfe_u32 v4, v1, 3, 1",
               f"v_and_b32 v16, 2, v1", f"v_lshl_or_b32 v16, v4, 2, v16", f"s_and_b32 s{sT0}, s{sW}, 6", f"v_or_b32 v17, s{sT0}, v2", f"v_xor_b32 v16, v16, v17",
               f"v_lshl_add_u32 v16, v16, 4, v3", f"v_lshl_add_u32 v16, v1, 7, v16", f"v_add_u32 v16, {phslot}, v16", f"v_xor_b32 v17, 16, v16",
               f"v_lshlrev_b32 v18, 1, v4", f"s_and_b32 s{sT0}, s{sW}, 1", f"s_lshl_b32 s{sT0}, s{sT0}, 1", f"v_or_b32 v19, s{sT0}, v2", f"v_xor_b32 v18, v18, v19",
               f"v_lshl_add_u32 v18, v18, 4, v3", f"v_lshl_add_u32 v18, v1, 6, v18", f"v_add_u32 v18, {phslot+16384}, v18", f"v_xor_b32 v19, 16, v18"]
        pre = out; out = []
        for s in range(4):
            b = ACC1 + 8 * s
            out += [f"ds_read_b64_tr_b16 {v(b,2)}, v16 offset:{4096*s}", f"ds_read_b64_tr_b16 {v(b+2,2)}, v17 offset:{4096*s+512}",
                    f"ds_read_b64_tr_b16 {v(b+4,2)}, v18 offset:{2048*s}", f"ds_read_b64_tr_b16 {v(b+6,2)}, v19 offset:{2048*s+256}"]
        out += [f"s_lshl_b32 s{sT0}, s{sH}, 4", f"s_add_u32 s{sT0}, s{sT0}, s{sRB}", f"s_lshl_b32 s{sT0}, s{sT0}, 13", f"s_add_u32 s{sT0}, s{sT0}, s{sW1K}", f"s_add_u32 s{sT2}, s{sT0}, {WS_KVP}"]
        for s in range(4):
            b = ACC1 + 8 * s
            out += [f"v_mfma_f32_16x16x32_bf16 v[20:23], {v(b,4)}, {v(b+4,4)}, {'0' if s == 0 else 'v[20:23]'}"]
        out += ["s_nop 0"] * 2
        out += [(f"buffer_store_dwordx4 v[20:23], v{L}, {srd(S_WS)}, s{sT2} offen sc1", 'kvp')]
        return pre, out
    def gelu(self, G, U, p, tag):
        T = [16, 17, 18, 19, 20, 21, 22, 23, 24, 25, 26, 27]
        st = [[] for _ in range(16)]
        out = []
        def s1(r): t = T[(r % 4) * 3]; return [f"v_mul_f32 v{t}, v{G+r}, v{G+r}", f"v_fma_f32 v{t}, v{t}, v{vC1}, v{vC0}", f"v_mul_f32 v{t}, v{t}, v{G+r}", f"v_exp_f32 v{t}, v{t}", f"v_mul_f32 v{U+r}, v{G+r}, v{U+r}"]
        def s2(r): t = T[(r % 4) * 3]; return [f"v_fma_f32 v{t}, v{t}, v{vSD2}, v{vSD2}", f"v_rcp_f32 v{t}, v{t}"]
        def s3(r): t = T[(r % 4) * 3]; return [f"v_mul_f32 v{U+r}, v{U+r}, v{t}"]
        for r in range(18):
            if r < 16: out += s1(r)
            if 1 <= r <= 16: out += s2(r - 1)
            if r >= 2:
                out += s3(r - 2)
                if (r - 2) % 2 == 1:
                    j = (r - 2) // 2
                    out += [f"v_cvt_pk_bf16_f32 v{G+j}, v{U+2*j}, v{U+2*j+1}"]
                    if j in (3, 7):
                        fr = j // 4
                        if fr == 0:
                            out += [f"s_lshl_b32 s{sT2}, s{sJ}, 13", f"s_lshl_b32 s{sT3}, s{sHALF}, 11", f"s_add_u32 s{sT2}, s{sT2}, s{sT3}", f"s_add_u32 s{sT2}, s{sT2}, {p*4096}"]
                        out += [(f"buffer_store_dwordx4 {v(G+4*fr,4)}, v{vHS}, {srd(S_WS)}, s{sT2} offen offset:{1024*fr} sc1", tag)]
        return out
    def q_epilogue(self, Q, areg, hoff):
        T = [1, 2, 3, 4]
        F, G = self.feat_front(Q, Q, T)
        out = self.wphi_read(areg, hoff) + F[:8] + self.wphi_fix() + F[8:] + G
        a, b = 1, 2
        tt = [3, 4, 35, 36]
        for j in range(8):
            r0, r1 = Q + 2 * j, Q + 2 * j + 1
            out += [f"v_fma_f32 v{tt[0]}, -v{r0}, v{vCE}, v{b}", f"v_fma_f32 v{tt[1]}, -v{r1}, v{vCE}, v{b}",
                    f"v_fma_f32 v{tt[2]}, v{r0}, v{vCE}, v{a}", f"v_fma_f32 v{tt[3]}, v{r1}, v{vCE}, v{a}",
                    f"v_exp_f32 v{tt[0]}, v{tt[0]}", f"v_exp_f32 v{tt[1]}, v{tt[1]}", f"v_exp_f32 v{tt[2]}, v{tt[2]}", f"v_exp_f32 v{tt[3]}, v{tt[3]}",
                    f"v_cvt_pk_bf16_f32 v{16+j}, v{tt[0]}, v{tt[1]}", f"v_cvt_pk_bf16_f32 v{Q+j}, v{tt[2]}, v{tt[3]}"]
        out += [f"v_mov_b32 v{Q+8+j}, v{16+j}" for j in range(8)]
        return out
    def pair_reads(self, it, i, buf, q):
        if q:
            b = self.window('TA', list(range(vTA, vTA + 4)) + list(range(vTB, vTB + 4)), it.addr, it.addr + 16384)
            o = it.addr - b
            return [f"ds_read_b64_tr_b16 {v(buf,2)}, v{vTA+i} offset:{o}", f"ds_read_b64_tr_b16 {v(buf+2,2)}, v{vTA+i} offset:{o+512}",
                    f"ds_read_b64_tr_b16 {v(buf+4,2)}, v{vTB+i} offset:{o}", f"ds_read_b64_tr_b16 {v(buf+6,2)}, v{vTB+i} offset:{o+512}"]
        b = self.window('TA', range(vTA, vTA + 4), it.addr, it.addr + 16384)
        o = it.addr - b
        return [f"ds_read_b64_tr_b16 {v(buf,2)}, v{vTA+i} offset:{o}", f"ds_read_b64_tr_b16 {v(buf+2,2)}, v{vTA+i} offset:{o+512}",
                f"ds_read_b64_tr_b16 {v(buf+4,2)}, v{vTA+i} offset:{o+8192}", f"ds_read_b64_tr_b16 {v(buf+6,2)}, v{vTA+i} offset:{o+8192+512}"]
    def pair_block(self, pl, it, nxt, c, acc, q, budget, pre_bar=None, post_bar=None, need=()):
        op = self.op
        for i in range(4):
            buf = FR + 8 * (i % 2); nb = FR + 8 * ((i + 1) % 2)
            x = v(self.xf(c, i), 4)
            if i == 3:
                if pre_bar: pre_bar()
                self.flush_dma()
                self.barrier(([nxt.name] if nxt else []) + list(need), lg0=True)
                pl.release(it.name)
            z = (c == 0 and i == 0)
            op(f"v_mfma_f32_32x32x16_bf16 {v(acc,16)}, {v(buf,4)}, {x}, {'0' if z else v(acc,16)}")
            if i < 3:
                for t in self.pair_reads(it, i + 1, nb, q): op(t)
            elif nxt:
                for t in self.pair_reads(nxt, 0, nb, q): op(t)
            if i == 3:
                if post_bar: post_bar()
                self.issue(pl)
            self.slots(budget)
            op(f"v_mfma_f32_32x32x16_bf16 {v(acc+16,16)}, {v(buf+4,4)}, {x}, {'0' if z else v(acc+16,16)}")
            if i == 0:
                op(f"v_mfma_f32_16x16x32_bf16 {v(CSA,4)}, {v(buf,4)}, {v(BSEL,4)}, {'0' if c == 0 else v(CSA,4)}")
                op(f"v_mfma_f32_16x16x32_bf16 {v(CSA+4,4)}, {v(buf+4,4)}, {v(BSEL,4)}, {'0' if c == 0 else v(CSA+4,4)}")
            self.slots(budget)
            if i == 2 and c == 6:
                op(f"ds_write_b128 v{vCSW}, {v(CSA,4)}\nds_write_b128 v{vCSW}, {v(CSA+4,4)} offset:512")
    def pair_corr(self, acc):
        return self.cs_read(0, 16) + self.cs_read(1, 20) + self.cs_build(16, CA_G) + self.cs_build(20, CA_U) + self.corr(acc, CA_G) + self.corr(acc + 16, CA_U)

    def role(self, q):
        c = self.c; op = self.op; pl = self.pl
        nm = 'Q' if q else 'GU'
        items = []
        if q: items += [Item('WPQ', 2, 'WPQ')]
        items += [Item(f"{nm}0_{k}", 2, nm, c=k, p=0) for k in range(5)] + [Item('PH', 3, 'RES')] + [Item(f"{nm}0_{k}", 2, nm, c=k, p=0) for k in (5, 6)]
        items += [Item(f"{nm}1_{k}", 2, nm, c=k, p=1) for k in range(7)]
        if q: items += [Item('RED', 8, 'RES'), Item('KVL', 4, 'RES')]
        else:
            items += [Item(f"W2_{u}", 1, 'W2', u=u) for u in range(30)] + [Item('XCH', 2, 'RES')] + [Item(f"W2_{u}", 1, 'W2', u=u) for u in range(30, 36)]
        pl.add(items)
        for k in range(7): self.blockA(k, pl)
        self.pre_bx()
        self.flush_dma()
        self.barrier([f"{nm}0_0"] + (['WPQ'] if q else []), lg0=True)
        self.stamp(1)
        pl.release("X6", "KV6"); self.issue(pl)
        for t in self.pair_reads(pl.by[f"{nm}0_0"], 0, FR, q): op(t)
        self.nonce_check()
        lab = f"L_{nm}_V"
        op(f"s_cmp_lg_u32 s{sHALF}, 0\ns_cbranch_scc1 {lab}")
        saved = (self.e.st.clone(), pl.clone(), list(self.dmaq), dict(self.base), set(self.seen))
        self.half(q, 0, pl)
        self.e.label(lab)
        self.e.st, pl2, self.dmaq, self.base, self.seen = saved
        self.half(q, 1, pl2)
    def half(self, q, hf, pl):
        c = self.c; op = self.op
        nm = 'Q' if q else 'GU'
        ph = pl.by['PH']; assert ph.slot is not None
        self.fill = self.stats_finish(not q)
        if hf == 0:
            self.fill = self.wphi_addr(14, L_WPK) + self.wphi_read(14, 0) + self.fill + self.k_epilogue(ph.addr)
        else:
            self.fill += self.v_epilogue(ph.addr)
        pre, kvs = self.kv_stage(ph.addr)
        KVB = 2
        def after_kvb(): self.fill += pre + kvs
        def flag_fk():
            if hf == 0: self.flag(f"s_lshl_b32 s{sT1}, s{sH}, 7\ns_lshl_b32 s{sT0}, s{sRB}, 2\ns_add_u32 s{sT1}, s{sT1}, s{sT0}\ns_add_u32 s{sT1}, s{sT1}, {WS_FK}")
            self.stamp(3)
        for k in range(7):
            it = pl.by[f"{nm}0_{k}"]; nxt = pl.by[f"{nm}0_{k+1}"] if k < 6 else pl.by[f"{nm}1_0"]
            bud = (13 if hf == 0 else 5) if k <= KVB else 6
            pre_bar = post_bar = None; need = []
            if k == KVB: pre_bar = lambda: self.flush(dma=False); post_bar = after_kvb
            if k == KVB + 1:
                pre_bar = lambda: self.flush(dma=False); post_bar = lambda: pl.release('PH')
            if k == KVB + 3: need = ['kvp']; post_bar = flag_fk
            if k == 6: post_bar = lambda: self.fill.extend(self.pair_corr(ACC0))
            self.pair_block(pl, it, nxt, k, ACC0, q, bud, pre_bar, post_bar, need)
        self.stamp(4)
        if q: self.q_tail(hf, pl)
        else: self.ffn_tail(hf, pl)

    def ffn_tail(self, hf, pl):
        c = self.c; op = self.op
        self.fill += self.gelu(ACC0, ACC0 + 16, 0, 'h0')
        def flag_h1():
            if hf == 0: self.flag(f"s_lshl_b32 s{sT1}, s{sRB}, 7\ns_lshl_b32 s{sT0}, s{sJ}, 2\ns_add_u32 s{sT1}, s{sT1}, s{sT0}\ns_add_u32 s{sT1}, s{sT1}, {WS_FH1}")
            self.stamp(5)
        for k in range(7):
            it = pl.by[f"GU1_{k}"]; nxt = pl.by[f"GU1_{k+1}"] if k < 6 else None
            pre_bar = post_bar = None; need = []
            if k == 3: pre_bar = lambda: self.flush(dma=False)
            if k == 5: need = ['h0']; post_bar = flag_h1
            if k == 6: post_bar = lambda: self.fill.extend(self.pair_corr(ACC1))
            self.pair_block(pl, it, nxt, k, ACC1, False, 6, pre_bar, post_bar, need)
        self.stamp(6)
        G = self.gelu(ACC1, ACC1 + 16, 1, 'h1')
        fh = lambda base: f"s_lshr_b32 s{sT1}, s{sRT}, 1\ns_lshl_b32 s{sT1}, s{sT1}, 7\ns_add_u32 s{sT1}, s{sT1}, {base}"
        W2 = lambda u: pl.by[f"W2_{u}"]
        NG = 18
        gate_at = {c.g2 // 2: (WS_FH2, 14), c.g3 // 2: (WS_FO, 2)}
        if hf == 1:
            stores = [g for g in G if isinstance(g, tuple)]
            self.fill += [g for g in G if not isinstance(g, tuple)]
            self.flush()
            self.poll(fh(WS_FH1), 14)
            self.barrier([W2(0).name, W2(1).name], lg0=True)
            self.stamp(7)
            for t, tag in stores: op(t, tag)
            op(f"v_subrev_u32 v16, {32*896}, v{vDW2}")
            for k in range(NG - 1):
                if k in gate_at:
                    self.poll(fh(gate_at[k][0]), gate_at[k][1])
                self.flush_dma()
                self.barrier([W2(2 * k + 2).name, W2(2 * k + 3).name] + (['h1'] if k == 0 else []))
                if k == 0:
                    self.flag(f"s_lshl_b32 s{sT1}, s{sRB}, 7\ns_lshl_b32 s{sT0}, s{sJ}, 2\ns_add_u32 s{sT1}, s{sT1}, s{sT0}\ns_add_u32 s{sT1}, s{sT1}, {WS_FH2}")
                if k >= 1: pl.release(W2(2 * k - 2).name, W2(2 * k - 1).name)
                self.issue(pl, helper=True)
            self.barrier([])
            self.finish()
            return
        XR = 38
        vA0, vA1, vHL, vXO, vXW, vXRD = 28, 29, 30, 31, 14, 15
        L = vLANE
        setup = [f"s_lshr_b32 s{sT0}, s{sN}, 1", f"s_and_b32 s{sT1}, s{sN}, 1",
                 f"s_lshl_b32 s{sT2}, s{sRT}, 6", f"s_lshl_b32 s{sT3}, s{sT0}, 5", f"s_add_u32 s{sT2}, s{sT2}, s{sT3}", f"v_bfe_u32 v1, v{L}, 4, 5", f"v_add_u32 v1, s{sT2}, v1", f"v_mul_u32_u24 v1, 896, v1",
                 f"s_lshl_b32 s{sT2}, s{sCT}, 7", f"s_lshl_b32 s{sT3}, s{sT1}, 6", f"s_add_u32 s{sT2}, s{sT2}, s{sT3}", f"v_bfe_u32 v2, v{L}, 9, 1", f"v_lshlrev_b32 v2, 4, v2", f"v_add3_u32 v{vXO}, v1, v2, s{sT2}",
                 (f"buffer_load_dwordx4 {v(XR,4)}, v{vXO}, {srd(S_X)}, 0 offen", 'xr'), (f"buffer_load_dwordx4 {v(XR+4,4)}, v{vXO}, {srd(S_X)}, 0 offen offset:32", 'xr'),
                 f"s_lshl_b32 s{sT2}, s{sRT}, 1", f"s_add_u32 s{sT2}, s{sT2}, s{sT0}", f"s_mul_i32 s{sT2}, s{sT2}, {144*1024}", f"s_lshl_b32 s{sT3}, s{sT1}, 11", f"s_add_u32 s{sT2}, s{sT2}, s{sT3}",
                 f"s_add_u32 s{sT2}, s{sT2}, {WS_HF}", f"v_add_u32 v{vHL}, s{sT2}, v{L}",
                 f"v_bfe_u32 v1, v{L}, 9, 1", f"v_bfe_u32 v2, v{L}, 6, 2", f"v_lshl_add_u32 v1, v1, 2, v2", f"s_lshl_b32 s{sT2}, s{sT1}, 5", f"v_add_u32 v1, s{sT2}, v1",
                 f"v_bfe_u32 v2, v{L}, 8, 1", f"v_lshlrev_b32 v2, 5, v2", f"v_bfe_u32 v3, v{L}, 4, 2", f"v_lshl_add_u32 v2, v3, 3, v2",
                 f"v_bfe_u32 v3, v{L}, 7, 1", f"v_lshlrev_b32 v3, 6, v3", f"v_xor_b32 v2, v2, v3", f"s_lshl_b32 s{sT2}, s{sT1}, 6", f"v_xor_b32 v2, s{sT2}, v2",
                 f"v_lshl_add_u32 v{vA0}, v1, 7, v2", f"v_xor_b32 v{vA1}, 64, v{vA0}",
                 f"s_lshl_b32 s{sT2}, s{sN}, 12", f"v_add_u32 v{vXW}, s{sT2}, v{L}", f"v_xor_b32 v{vXRD}, 4096, v{vXW}",
                 f"s_lshl_b32 s96, s{sT1}, 9"]
        self.flush()
        self.fill += setup + G
        self.flush()
        self.base['P2'] = 0
        self.barrier([W2(u).name for u in range(36) if W2(u).slot is not None], lg0=True)
        self.stamp(7)
        HR = XF; NH = 28
        ACF, ACS = ACC0, ACC1
        def hload(f):
            u, i = f // 2, f % 2
            ks = 8 * u if u < 14 else (8 * (u - 14) + 4 if u < 28 else 112 + 4 * (u - 28))
            op(f"s_mov_b32 s{sSO}, {ks*1024}")
            op(f"buffer_load_dwordx4 {v(HR+4*(f%NH),4)}, v{vHL}, {srd(S_WS)}, s{sSO} offen offset:{1024*i} sc1", tag='hl')
        st = {'next': 0, 'limit': 28, 'done': 0}
        def refill(n):
            while n > 0 and st['next'] < min(st['limit'], st['done'] + NH):
                hload(st['next']); st['next'] += 1; n -= 1
        refill(28)
        def reads(f, buf):
            u, i = f // 2, f % 2
            it = W2(u)
            b = self.window('P2', (vA0, vA1), it.addr, it.addr + 8192)
            o = it.addr - b + 2048 * i
            return [f"ds_read_b64_tr_b16 {v(buf,2)}, v{vA0} offset:{o}", f"ds_read_b64_tr_b16 {v(buf+2,2)}, v{vA0} offset:{o+1024}",
                    f"ds_read_b64_tr_b16 {v(buf+4,2)}, v{vA1} offset:{o}", f"ds_read_b64_tr_b16 {v(buf+6,2)}, v{vA1} offset:{o+1024}"]
        for t in reads(0, FR): op(t)
        GV = 48
        for f in range(72):
            u, i = f // 2, f % 2
            k = u // 2
            buf = FR + 8 * (f % 2); nb = FR + 8 * ((f + 1) % 2)
            acc = ACF if u < 28 else ACS
            z = f in (0, 56)
            h = v(HR + 4 * (f % NH), 4)
            op(f"v_mfma_f32_32x32x16_bf16 {v(acc,16)}, {v(buf,4)}, {h}, {'0' if z else v(acc,16)}")
            if f == 55:
                op(f"v_subrev_u32 v{vA0}, s96, v{vA0}\nv_subrev_u32 v{vA1}, s96, v{vA1}")
            if f < 71:
                for t in reads(f + 1, nb): op(t)
            op(f"v_mfma_f32_32x32x16_bf16 {v(acc+16,16)}, {v(buf+4,4)}, {h}, {'0' if z else v(acc+16,16)}")
            st['done'] = f + 1
            if f % 4 == 0 and k < NG - 1:
                if k == 14:
                    xch = pl.by['XCH']; assert xch.slot is not None
                    op(f"v_add_u32 v{vXW}, {xch.addr}, v{vXW}\nv_add_u32 v{vXRD}, {xch.addr}, v{vXRD}")
                    for qd in range(4): op(f"ds_write_b128 v{vXW}, {v(ACF+16+4*qd,4)} offset:{1024*qd}")
                self.barrier(['h1'] if k == 0 else [], lg0=(k == 14))
                if k >= 1: pl.release(W2(2 * k - 2).name, W2(2 * k - 1).name)
                self.issue(pl, skip=True)
                if k == c.g2 // 2: st['limit'] = 56; self.stamp(8)
                if k == c.g3 // 2: st['limit'] = 72; self.stamp(9)
                if k == 14:
                    F = [f"ds_read_b128 {v(GV+4*qd,4)}, v{vXRD} offset:{1024*qd}" for qd in range(4)]
                    F += [f"v_permlane32_swap_b32 v{XR}, v{XR+2}", f"v_permlane32_swap_b32 v{XR+1}, v{XR+3}", f"v_permlane32_swap_b32 v{XR+4}, v{XR+6}", f"v_permlane32_swap_b32 v{XR+5}, v{XR+7}"]
                    for r in range(16):
                        F += [f"v_add_f32 v{ACF+r}, v{ACF+r}, v{GV+r}", f"v_mul_f32 v{GV+r}, {fbits(-1.4426950408889634)}, v{ACF+r}", f"v_exp_f32 v{GV+r}, v{GV+r}"]
                        F += [f"v_lshlrev_b32 v{ACF+16+r}, 16, v{XR+r//2}" if r % 2 == 0 else f"v_and_b32 v{ACF+16+r}, 0xffff0000, v{XR+r//2}"]
                        if r >= 1: F += [f"v_add_f32 v{GV+r-1}, 1.0, v{GV+r-1}", f"v_rcp_f32 v{GV+r-1}, v{GV+r-1}"]
                        if r >= 2: F += [f"v_mul_f32 v{GV+r-2}, v{GV+r-2}, v{ACF+r-2}"]
                    F += [f"v_add_f32 v{GV+15}, 1.0, v{GV+15}", f"v_rcp_f32 v{GV+15}, v{GV+15}", f"v_mul_f32 v{GV+14}, v{GV+14}, v{ACF+14}", f"v_mul_f32 v{GV+15}, v{GV+15}, v{ACF+15}"]
                    self.fill += F
            refill(4 if st['limit'] - st['next'] > 8 else 2)
            self.slots(12, 0)
        self.flush()
        self.stamp(10)
        for qd in range(4): op(f"ds_write_b128 v{vXW}, {v(ACS+16+4*qd,4)} offset:{1024*qd}")
        self.barrier([], lg0=True)
        for qd in range(4): op(f"ds_read_b128 {v(ACS+16+4*qd,4)}, v{vXRD} offset:{1024*qd}")
        for r in range(16):
            op(f"v_add_f32 v{ACS+r}, v{ACS+r}, v{ACS+16+r}\nv_fma_f32 v{ACS+r}, v{ACS+r}, v{GV+r}, v{ACF+16+r}")
            if r % 2 == 1: op(f"v_cvt_pk_bf16_f32 v{16+r//2}, v{ACS+r-1}, v{ACS+r}")
        op("v_permlane32_swap_b32 v16, v18\nv_permlane32_swap_b32 v17, v19\nv_permlane32_swap_b32 v20, v22\nv_permlane32_swap_b32 v21, v23")
        op(f"buffer_store_dwordx4 v[16:19], v{vXO}, {srd(S_OUT)}, 0 offen\nbuffer_store_dwordx4 v[20:23], v{vXO}, {srd(S_OUT)}, 0 offen offset:32")
        self.finish()

    def q_tail(self, hf, pl):
        c = self.c; op = self.op; L = vLANE
        wpq = pl.by['WPQ']
        AW = 37
        addr = self.wphi_addr(AW, wpq.addr + 2 * hf * 1568)
        ea = self.q_epilogue(ACC0, AW, 0); eb = self.q_epilogue(ACC0 + 16, AW, 1568)
        self.fill += addr + ea
        RB_ = c.red_blk
        def red_issue():
            red = pl.by['RED']; assert red.slot is not None, "RED not allocated"
            self.flush_dma()
            self.poll(f"s_lshr_b32 s{sT1}, s{sQI}, 1\ns_lshl_b32 s{sT1}, s{sT1}, 7\ns_add_u32 s{sT1}, s{sT1}, {WS_FK}", 16)
            self.stamp(5)
            op(f"s_lshr_b32 s{sT0}, s{sQI}, 1\ns_lshl_b32 s{sT0}, s{sT0}, 17\ns_and_b32 s{sT1}, s{sQI}, 1\ns_lshl_b32 s{sT1}, s{sT1}, 12\ns_add_u32 s{sT0}, s{sT0}, s{sT1}")
            op(f"s_lshl_b32 s{sT1}, s{sN}, 10\ns_add_u32 s{sT0}, s{sT0}, s{sT1}\ns_add_u32 s{sT0}, s{sT0}, {WS_KVP + hf*8*8192}")
            for k in range(8):
                op(f"s_add_u32 m0, s{sT1}, {red.addr + (8*hf+k)*4096}\ns_add_u32 s{sSO}, s{sT0}, {k*8192}")
                op(f"buffer_load_dwordx4 v{L}, {srd(S_WS)}, s{sSO} offen sc1 lds", tag='red')
        def red_sum():
            red = pl.by['RED']
            F = [f"s_lshl_b32 s{sT0}, s{sN}, 10", f"s_add_u32 s{sT0}, s{sT0}, {red.addr}", f"v_add_u32 v15, s{sT0}, v{L}"]
            rd = lambda k, dst: f"ds_read_b128 {v(dst,4)}, v15 offset:{k*4096}"
            bufs = [20, WPH, WPH + 4]
            F += [rd(0, 16), rd(1, bufs[1 % 3]), rd(2, bufs[2 % 3])]
            for k in range(1, 16):
                if k + 2 < 16: F += [rd(k + 2, bufs[(k + 2) % 3])]
                F += [f"v_add_f32 v{16+r}, v{16+r}, v{bufs[k%3]+r}" for r in range(4)]
            F += [f"v_cvt_pk_bf16_f32 v16, v16, v17", f"v_cvt_pk_bf16_f32 v17, v18, v19",
                  f"v_bfe_u32 v1, v{L}, 4, 4", f"s_and_b32 s{sT0}, s{sN}, 1", f"s_lshl_b32 s{sT0}, s{sT0}, 4", f"v_add_u32 v1, s{sT0}, v1",
                  f"v_bfe_u32 v2, v{L}, 8, 2", f"s_lshr_b32 s{sT1}, s{sN}, 1", f"s_lshl_b32 s{sT1}, s{sT1}, 2", f"v_add_u32 v3, s{sT1}, v2",
                  f"v_cmp_ne_u32 vcc, 7, v3", f"v_mov_b32 v4, 0x3f803f80", f"v_cndmask_b32 v4, 0, v4, vcc",
                  f"v_cmp_eq_u32 vcc, 29, v1", f"s_nop 0", f"v_cndmask_b32 v16, v16, v4, vcc", f"v_cndmask_b32 v17, v17, v4, vcc",
                  f"v_and_b32 v3, 1, v2", f"v_lshl_add_u32 v1, v3, 5, v1", f"v_lshlrev_b32 v1, 4, v1", f"v_lshrrev_b32 v2, 1, v2", f"v_lshl_or_b32 v1, v2, 28, v1",
                  f"v_permlane32_swap_b32 v16, v18", f"v_permlane32_swap_b32 v17, v19",
                  f"s_lshl_b32 s{sT0}, s{sQI}, 11", f"s_lshr_b32 s{sT1}, s{sN}, 1", f"s_lshl_b32 s{sT1}, s{sT1}, 10", f"s_add_u32 s{sT0}, s{sT0}, s{sT1}", f"s_add_u32 s{sT2}, s{sT0}, {WS_KVF}",
                  (f"buffer_store_dwordx4 v[16:19], v1, {srd(S_WS)}, s{sT2} offen sc1", 'kvf')]
            self.fill += F + eb
        def flag_fr():
            if hf == 0: self.flag(f"s_lshr_b32 s{sT1}, s{sQI}, 4\ns_lshl_b32 s{sT1}, s{sT1}, 7\ns_and_b32 s{sT0}, s{sQI}, 15\ns_lshl_b32 s{sT0}, s{sT0}, 2\ns_add_u32 s{sT1}, s{sT1}, s{sT0}\ns_add_u32 s{sT1}, s{sT1}, {WS_FR}")
            self.stamp(6)
        for k in range(7):
            it = pl.by[f"Q1_{k}"]; nxt = pl.by[f"Q1_{k+1}"] if k < 6 else None
            pre_bar = post_bar = None; need = []
            if k == RB_: post_bar = lambda: (self.issue(pl), red_issue())
            if k == RB_ + 2: need = ['red']; pre_bar = lambda: self.flush(dma=False); post_bar = red_sum
            self.pair_block(pl, it, nxt, k, ACC1, True, 8, pre_bar, post_bar, need)
        self.flush()
        self.barrier(['kvf'], lg0=True)
        pl.release('RED'); self.issue(pl)
        flag_fr()
        self.fill += self.pair_corr(ACC1) + self.q_epilogue(ACC1, AW, 4 * 1568) + self.q_epilogue(ACC1 + 16, AW, 5 * 1568)
        self.flush()
        self.stamp(7)
        kvl = pl.by['KVL']; assert kvl.slot is not None
        self.poll(f"s_lshl_b32 s{sT1}, s{sJQ}, 7\ns_add_u32 s{sT1}, s{sT1}, {WS_FR}", 16)
        self.stamp(8)
        op(f"s_lshl_b32 s{sT0}, s{sJQ}, 15\ns_lshl_b32 s{sT1}, s{sW}, 12\ns_add_u32 s{sT0}, s{sT0}, s{sT1}\ns_add_u32 s{sT0}, s{sT0}, {WS_KVF}")
        for k in range(4):
            op(f"s_add_u32 m0, s{sT1}, {kvl.addr + k*1024}\ns_add_u32 s{sSO}, s{sT0}, {k*1024}")
            op(f"buffer_load_dwordx4 v{L}, {srd(S_WS)}, s{sSO} offen sc1 lds", tag='kvl')
        op(f"v_add_u32 v14, {kvl.addr + 2*hf*4096}, v{L}")
        op(f"s_lshl_b32 s{sT2}, s{sJQ}, 14\ns_add_u32 s{sT2}, s{sT2}, {112*1024 + hf*4096}")
        self.barrier(['kvl'])
        KF = XF
        tiles = [(ACC0, 0), (ACC0 + 16, 1), (ACC1, 4), (ACC1 + 16, 5)]
        for ti, (Q, ho) in enumerate(tiles):
            for s in range(4): op(f"ds_read_b128 {v(KF+16*ti+4*s,4)}, v14 offset:{ho*4096+s*1024}")
        OA = [XF + 64, XF + 80, FR]
        AP = [(XF + 64, XF + 80), (XF + 96, FR)]
        for ti, (Q, ho) in enumerate(tiles):
            P, M = AP[ti % 2]
            kf = KF + 16 * ti
            op(f"v_mfma_f32_32x32x16_bf16 {v(P,16)}, {v(kf,4)}, {v(Q,4)}, 0\nv_mfma_f32_32x32x16_bf16 {v(M,16)}, {v(kf+8,4)}, {v(Q+8,4)}, 0")
            op(f"v_mfma_f32_32x32x16_bf16 {v(P,16)}, {v(kf+4,4)}, {v(Q+4,4)}, {v(P,16)}\nv_mfma_f32_32x32x16_bf16 {v(M,16)}, {v(kf+12,4)}, {v(Q+12,4)}, {v(M,16)}")
            if ti % 2 == 0: continue
            for tj in (ti - 1, ti):
                P, M = AP[tj % 2]; Q, ho = tiles[tj]
                op(f"v_rcp_f32 v1, v{P+13}\nv_rcp_f32 v2, v{M+13}\nv_mov_b32 v4, {fbits(1e-6)}\nv_fma_f32 v3, v{P+12}, v1, v4\nv_fma_f32 v3, v{M+12}, v2, v3\nv_rcp_f32 v3, v3")
                op(f"s_nop 0\nv_mul_f32 v1, v1, v3\nv_mul_f32 v2, v2, v3\nv_mov_b32 v3, v1\nv_mov_b32 v4, v2")
                op(f"v_permlane32_swap_b32 v3, v1\nv_permlane32_swap_b32 v4, v2")
                op(f"v_mul_f32 v3, v1, v{vMASK}\nv_mul_f32 v4, v2, v{vMASK}")
                for r in range(16):
                    a1, a2 = (1, 2) if r < 12 else (3, 4)
                    op(f"v_mul_f32 v{P+r}, v{P+r}, v{a1}\nv_fma_f32 v{P+r}, v{M+r}, v{a2}, v{P+r}")
                    if r % 2 == 1: op(f"v_cvt_pk_bf16_f32 v{Q+r//2}, v{P+r-1}, v{P+r}")
                op(f"s_add_u32 s{sSO}, s{sT2}, {ho*2048}")
                op(f"buffer_store_dwordx4 {v(Q,4)}, v{vHS}, {srd(S_WS)}, s{sSO} offen sc1\nbuffer_store_dwordx4 {v(Q+4,4)}, v{vHS}, {srd(S_WS)}, s{sSO} offen offset:1024 sc1", tag='o')
        self.stamp(9)
        self.barrier(['o'])
        if hf == 0: self.flag(f"s_lshl_b32 s{sT1}, s{sRB}, 7\ns_lshl_b32 s{sT0}, s{sJQ}, 2\ns_add_u32 s{sT1}, s{sT1}, s{sT0}\ns_add_u32 s{sT1}, s{sT1}, {WS_FO}")
        self.finish()

    def finish(self):
        op = self.op
        if self.c.stamps:
            self.stamp(11)
            op("s_memrealtime s[68:69]")
            self.e.raw("  s_waitcnt vmcnt(0) lgkmcnt(0)")
            op(f"s_lshl_b32 s{sT0}, s2, 3\ns_add_u32 s{sT0}, s{sT0}, s{sW}\ns_lshl_b32 s{sT0}, s{sT0}, 8\ns_add_u32 s{sT0}, s{sT0}, {WS_DBG}")
            op(f"v_lshl_or_b32 v1, v{vLANE}, 24, 0")
            regs = list(range(44, 70)) + [90, 91, 92, 93]
            for k in range(0, len(regs), 2):
                op(f"v_mov_b32 v2, s{regs[k]}\nv_mov_b32 v3, s{regs[k+1]}\nbuffer_store_dwordx2 v[2:3], v1, {srd(S_WS)}, s{sT0} offen offset:{4*k}")
                self.e.raw("  s_waitcnt vmcnt(0)"); self.e.st.vm = []
        op("s_endpgm")

    def build(self):
        e = self.e
        hdr = open('cdna_kernels/' + KNAME[:-7] + '.s.ref').read().split('; Override launch')[0]
        e.raw(hdr.rstrip('\n'))
        e.raw(f"; @launch grid=(256,1,1) block=(512,1,1) lds={LDS_BYTES}")
        e.raw(f'.amdgcn_target "amdgcn-amd-amdhsa--gfx950"\n.text\n.globl {KNAME}\n.p2align 8\n.type {KNAME},@function\n{KNAME}:')
        self.prologue()
        self.op(f"s_cmp_lg_u32 s{sROLE}, 0\ns_cbranch_scc1 L_role_q")
        saved = (self.e.st.clone(), self.pl.clone(), list(self.dmaq), dict(self.base), set(self.seen))
        self.role(False)
        e.label("L_role_q")
        self.e.st, self.pl, self.dmaq, self.base, self.seen = saved
        self.role(True)
        e.label("L_end")
        e.raw("  s_endpgm")
        e.raw(f'.section .rodata,"a"\n.p2align 6\n.amdhsa_kernel {KNAME}\n  .amdhsa_next_free_vgpr 256\n  .amdhsa_next_free_sgpr 102\n  .amdhsa_accum_offset 256\n'
              '  .amdhsa_group_segment_fixed_size 0\n  .amdhsa_kernarg_size 88\n  .amdhsa_user_sgpr_count 2\n  .amdhsa_user_sgpr_kernarg_segment_ptr 1\n'
              '  .amdhsa_system_sgpr_workgroup_id_x 1\n  .amdhsa_float_denorm_mode_32 3\n.end_amdhsa_kernel')
        return e.text()

if __name__ == "__main__":
    cfg = Cfg()
    out = sys.argv[1]
    for a in sys.argv[2:]:
        k, val = a.split('=')
        setattr(cfg, k, eval(val))
    g = Gen(cfg)
    t = g.build()
    open(out, 'w').write(t)
    print("written", out, len(t), "bytes; nops", g.e.nops)
```
